```python
import torch

def _softmax(x, axis=-1):
    return torch.softmax(x, dim=axis)
def _gelu(x):
    return torch.nn.functional.gelu(x, approximate="tanh")
def _silu(x):
    return torch.nn.functional.silu(x)
def _sigmoid(x):
    return torch.sigmoid(x)
def _layernorm(x, axis=-1, eps=1e-5):
    m = x.mean(dim=axis, keepdim=True)
    v = x.var(dim=axis, keepdim=True, unbiased=False)
    return (x - m) / torch.sqrt(v + eps)
def _scatter_add(tgt, idx, src, axis=0):
    return tgt.clone().index_add_(axis, idx, src)
def _segment_sum(src, seg, n):
    out = torch.zeros((n,) + src.shape[1:], dtype=src.dtype)
    return out.index_add_(0, seg, src)
def _pad(x, pw):
    flat = tuple(v for pair in reversed(pw) for v in pair)
    return torch.nn.functional.pad(x, flat)

kernel_name = 'gated_mix__linear_attn_block__dense_activation_relu__prompt'

def setup_inputs():

    _w = (lambda a: (lambda t: t.to(torch.bfloat16) if t.is_floating_point() else t)(torch.as_tensor(a)))
    def _A_setup():
        B, S, D = 1, 2048, 576
        return {
            "x": _w((lambda *s: torch.randn(*s, dtype=torch.bfloat16) * 0.05)(B, S, D)),
            "wqkv": _w((lambda *s: torch.randn(*s, dtype=torch.bfloat16) * 0.8)(D, 3 * D)),
            "wo": _w((lambda *s: torch.randn(*s, dtype=torch.bfloat16) * 0.2)(D, D)),
        }
    _A_in = _A_setup()

    def _B_setup():
        B, S, D, Dff = 1, 2048, 576, 4608
        return {
            "x": _w((lambda *s: torch.randn(*s, dtype=torch.bfloat16) * 0.05)(B, S, D)),
            "w1": _w((lambda *s: torch.randn(*s, dtype=torch.bfloat16) * 0.05)(D, Dff)),
            "w2": _w((lambda *s: torch.randn(*s, dtype=torch.bfloat16) * 0.05)(Dff, D)),
        }
    _B_in = _B_setup()

    return {
        "A_x": _A_in["x"],
        "A_wqkv": _A_in["wqkv"],
        "A_wo": _A_in["wo"],
        "B_x": _B_in["x"],
        "B_w1": _B_in["w1"],
        "B_w2": _B_in["w2"],
        "gate_w": _w((lambda *s: torch.randn(*s, dtype=torch.bfloat16) * 0.05)(576) * 16.0),
    }

def reference(A_x, A_wqkv, A_wo, B_x, B_w1, B_w2, gate_w):
    def _A_ref(x, wqkv, wo):
        B, S, D = x.shape
        H = 32; Dh = D // H
        qkv = (lambda x, *d: x.permute(*d))((x @ wqkv).reshape(B, S, 3, H, Dh), 2, 0, 3, 1, 4)
        q, k, v = qkv[0], qkv[1], qkv[2]
        phi = lambda t: torch.where(t > 0, t + 1, torch.exp(t)) + 1e-6
        pq, pk = phi(q), phi(k)
        kv = torch.einsum("bhsd,bhse->bhde", pk, v)
        z = torch.einsum("bhsd->bhd", pk)
        num = torch.einsum("bhqd,bhde->bhqe", pq, kv)
        den = torch.einsum("bhqd,bhd->bhq", pq, z)[..., None] + 1e-6
        o = num / den
        return (lambda x, *d: x.permute(*d))(o, 0, 2, 1, 3).reshape(B, S, D) @ wo

    def _B_ref(x, w1, w2):
        h = torch.einsum("bsd,df->bsf", x, w1)
        zero = torch.zeros_like(h)
        h = torch.maximum(h, zero)
        return torch.einsum("bsf,fd->bsd", h, w2)

    x = A_x
    g = _sigmoid((x * gate_w).sum(-1, keepdims=True))
    a = _A_ref(x, A_wqkv, A_wo)
    b = _B_ref(x, B_w1, B_w2)
    return g * a + (1 - g) * b
```

```python
GLAB=[0]
class Asm:
    def __init__(self):
        self.lines = []
        self.lab = 0
        self.lds_q = []
    def e(self, s):
        self.lines.append("    " + s)
    def c(self, s):
        self.lines.append("    ; " + s)
    def label(self, name):
        self.lines.append(name + ":")
    def newlab(self, base="L"):
        GLAB[0] += 1
        return "%s_%d" % (base, GLAB[0])
    def nop(self, n=1):
        while n > 0:
            k = min(n, 16)
            self.e("s_nop %d" % (k - 1))
            n -= k
    def lds_read(self, instr, regs):
        self.e(instr)
        self.lds_q.append(set(regs))
    def lds_other(self, instr):
        self.e(instr)
        self.lds_q.append(set())
    def need(self, regs):
        regs = set(regs)
        last = -1
        for i, s in enumerate(self.lds_q):
            if s & regs:
                last = i
        if last < 0:
            return
        remaining = len(self.lds_q) - 1 - last
        self.e("s_waitcnt lgkmcnt(%d)" % min(remaining, 15))
        keep = min(remaining, 15)
        self.lds_q = self.lds_q[len(self.lds_q) - keep:] if keep > 0 else []
    def lgkm0(self):
        self.e("s_waitcnt lgkmcnt(0)")
        self.lds_q = []
    def text(self):
        return "\n".join(self.lines) + "\n"

def kd(name, vgpr, sgpr=102, wg_y=False):
    s = ".amdhsa_kernel %s\n" % name
    s += "  .amdhsa_next_free_vgpr %d\n" % vgpr
    s += "  .amdhsa_next_free_sgpr %d\n" % sgpr
    s += "  .amdhsa_accum_offset %d\n" % (((vgpr + 3) // 4) * 4)
    s += "  .amdhsa_group_segment_fixed_size 0\n"
    s += "  .amdhsa_kernarg_size 80\n"
    s += "  .amdhsa_user_sgpr_count 2\n"
    s += "  .amdhsa_user_sgpr_kernarg_segment_ptr 1\n"
    s += "  .amdhsa_system_sgpr_workgroup_id_x 1\n"
    s += ".end_amdhsa_kernel\n"
    return s
```

```python
from gen import *
import os
EXP = os.environ.get('EXP','')

S=2048; D=576; DFF=4608
WS_H   = 0
WS_PQ  = WS_H + S*DFF*2
WS_PQS = WS_PQ + S*D*2
WS_KVP = WS_PQS + S*D*2
WS_WP  = WS_KVP + 16*32*342*4
WS_G   = WS_WP + D*D*2
WS_P   = WS_G + S*4
WS_END = WS_P + 4*S*D*4

STAGE = 16384 + 18432
XOFF = 0; WOFF = 16384

V_TID=0; V_LANE=1
V_XD=2
V_WD=6
V_XA=11
V_WA=15
V_T=16
V_XF=20
V_WF=36
V_ACC=108
V_E=180
def xf(s,f): return V_XF+8*s+4*f
def wf(s,j): return V_WF+36*s+4*j
def acc(f,j): return V_ACC+(f*9+j)*4

def rng(a,n): return "v[%d:%d]"%(a,a+n-1)

def gemm_setup_common(a):
    a.e("v_and_b32 v%d, 63, v0"%V_LANE)
    a.e("v_lshrrev_b32 v16, 4, v%d"%V_LANE)
    a.e("v_and_b32 v17, 15, v%d"%V_LANE)
    a.e("v_lshrrev_b32 v18, 1, v17")
    a.e("v_and_b32 v18, 7, v18")
    a.e("v_lshrrev_b32 v19, 1, v16")
    a.e("v_xor_b32 v18, v18, v19")
    a.e("v_lshlrev_b32 v18, 4, v18")
    a.e("v_and_b32 v19, 1, v16")
    a.e("v_lshlrev_b32 v19, 3, v19")
    a.e("v_add_u32 v18, v18, v19")
    a.e("s_lshl_b32 s9, s8, 5")
    a.e("v_add_u32 v19, s9, v17")
    a.e("v_lshlrev_b32 v19, 7, v19")
    a.e("v_add_u32 v18, v18, v19")
    for kh in range(2):
        for u in range(2):
            a.e("v_xor_b32 v%d, %d, v18"%(V_XA+2*kh+u, (4*kh+2*u)*16))
    a.e("v_lshlrev_b32 v18, 2, v16")
    a.e("v_lshrrev_b32 v19, 2, v17")
    a.e("v_add_u32 v18, v18, v19")
    a.e("v_mul_u32_u24 v18, 288, v18")
    a.e("v_and_b32 v19, 3, v17")
    a.e("v_lshlrev_b32 v19, 3, v19")
    a.e("v_add_u32 v18, v18, v19")
    a.e("v_add_u32 v%d, %d, v18"%(V_WA, WOFF))

def x_dma_offsets(a, rowstride_sgpr_or_imm, row0_sgpr):
    for t in range(4):
        a.e("s_lshl_b32 s9, s8, 8")
        a.e("s_add_u32 s9, s9, %d"%(64*t))
        a.e("v_add_u32 v16, s9, v%d"%V_LANE)
        a.e("v_lshrrev_b32 v17, 3, v16")
        a.e("v_and_b32 v18, 7, v16")
        a.e("v_lshrrev_b32 v19, 1, v17")
        a.e("v_and_b32 v19, 7, v19")
        a.e("v_xor_b32 v18, v18, v19")
        a.e("v_lshlrev_b32 v18, 4, v18")
        a.e("v_add_u32 v17, %s, v17"%row0_sgpr)
        a.e("v_mul_lo_u32 v17, v17, %s"%rowstride_sgpr_or_imm)
        a.e("v_add_u32 v%d, v17, v18"%(V_XD+t))

def w_dma_offsets(a, wstride_sgpr, kv=False, colbase_sgpr="s12", colbase2_sgpr="s13"):
    for t in range(5):
        a.e("s_mul_i32 s9, s8, 288")
        a.e("s_add_u32 s9, s9, %d"%(64*t))
        a.e("v_add_u32 v16, s9, v%d"%V_LANE)
        a.e("v_mul_u32_u24 v17, 3641, v16")
        a.e("v_lshrrev_b32 v17, 16, v17")
        a.e("v_mul_u32_u24 v18, 18, v17")
        a.e("v_sub_u32 v18, v16, v18")
        a.e("v_mul_lo_u32 v17, v17, %s"%wstride_sgpr)
        if not kv:
            a.e("v_lshlrev_b32 v18, 4, v18")
            a.e("v_add_u32 v17, v17, v18")
            a.e("v_add_u32 v%d, %s, v17"%(V_WD+t, colbase_sgpr))
        else:
            a.e("v_cmp_gt_u32 vcc, 9, v18")
            a.e("v_lshlrev_b32 v19, 4, v18")
            a.e("v_add_u32 v17, v17, v19")
            a.e("v_add_u32 v19, %s, v17"%colbase_sgpr)
            a.e("v_add_u32 v18, %s, v17"%colbase2_sgpr)
            a.e("v_cndmask_b32 v%d, v18, v19, vcc"%(V_WD+t))

def dma_issue(a, stage, xs="s[4:5]", ws_="s[6:7]"):
    base = stage*STAGE
    for t in range(4):
        a.e("s_lshl_b32 s9, s8, 12")
        a.e("s_add_u32 m0, s9, %d"%(base+XOFF+1024*t))
        a.e("s_nop 0")
        a.e("global_load_lds_dwordx4 v%d, %s"%(V_XD+t, xs))
    for t in range(5):
        a.e("s_mul_i32 s9, s8, 4608")
        a.e("s_add_u32 m0, s9, %d"%(base+WOFF+1024*t))
        if t == 4:
            a.e("s_mov_b32 exec_hi, 0")
        else:
            a.e("s_nop 0")
        a.e("global_load_lds_dwordx4 v%d, %s"%(V_WD+t, ws_))
        if t == 4:
            a.e("s_mov_b64 exec, -1")

def compute_step(a, stage):
    if 'nocompute' in EXP: return
    base = stage*STAGE
    def reads(s, kh):
        out = []
        for f in range(2):
            for u in range(2):
                out.append(("ds_read_b64 %s, v%d offset:%d"%(rng(xf(s,f)+2*u,2), V_XA+2*kh+u, base+XOFF+2048*f), [xf(s,f)+2*u, xf(s,f)+2*u+1]))
        for j in range(9):
            for u in range(2):
                out.append(("ds_read_b64_tr_b16 %s, v%d offset:%d"%(rng(wf(s,j)+2*u,2), V_WA, base+(32*kh+16*u)*288+32*j), [wf(s,j)+2*u, wf(s,j)+2*u+1]))
        return out
    rA = reads(0,0); rB = reads(1,1)
    for ins, regs in rA: a.lds_read(ins, regs)
    bi = 0
    for s in range(2):
        for j in range(9):
            a.need(list(range(xf(s,0), xf(s,0)+8)) + list(range(wf(s,j), wf(s,j)+4)))
            for f in range(2):
                a.e("v_mfma_f32_16x16x32_bf16 %s, %s, %s, %s"%(rng(acc(f,j),4), rng(wf(s,j),4), rng(xf(s,f),4), rng(acc(f,j),4)))
            if s == 0:
                n = 4 if j == 0 else 2
                for k in range(n):
                    if bi < len(rB):
                        a.lds_read(*rB[bi]); bi += 1
        if s == 0:
            while bi < len(rB):
                a.lds_read(*rB[bi]); bi += 1

def zero_acc(a):
    for r in range(V_ACC, V_ACC+72):
        a.e("v_mov_b32 v%d, 0"%r)

def main_loop(a, nsteps, xadv, wadv_sgpr, first=True, stage0=0):
    st = stage0
    if first:
        dma_issue(a, st)
    for s in range(nsteps):
        a.e("s_waitcnt vmcnt(0)")
        a.e("s_barrier")
        if s in (0, 1, 4, 8): stamp(a, {0:1,1:2,4:3,8:4}[s])
        if s+1 < nsteps:
            a.e("s_add_u32 s4, s4, %d"%xadv)
            a.e("s_addc_u32 s5, s5, 0")
            a.e("s_add_u32 s6, s6, %s"%wadv_sgpr)
            a.e("s_addc_u32 s7, s7, 0")
            if 'nodma' not in EXP: dma_issue(a, st^1)
        compute_step(a, st)
        st ^= 1
    return st

def phi4(a, src, dst2, tmp):
    t = tmp
    a.e("v_cvt_pk_bf16_f32 v%d, v%d, v%d"%(t, src, src+1))
    a.e("v_cvt_pk_bf16_f32 v%d, v%d, v%d"%(t+1, src+2, src+3))
    a.e("v_lshlrev_b32 v%d, 16, v%d"%(t+2, t))
    a.e("v_and_b32 v%d, 0xffff0000, v%d"%(t+3, t))
    a.e("v_lshlrev_b32 v%d, 16, v%d"%(t+4, t+1))
    a.e("v_and_b32 v%d, 0xffff0000, v%d"%(t+5, t+1))
    for i in range(4):
        x = t+2+i
        a.e("v_mul_f32 v%d, 0x3fb8aa3b, v%d"%(t+6, x))
        a.e("v_exp_f32 v%d, v%d"%(t+6, t+6))
        a.e("v_add_f32 v%d, 1.0, v%d"%(t+7, x))
        a.e("v_cmp_lt_f32 vcc, 0, v%d"%x)
        a.e("s_nop 1")
        a.e("v_cndmask_b32 v%d, v%d, v%d, vcc"%(x, t+6, t+7))
    a.e("v_cvt_pk_bf16_f32 v%d, v%d, v%d"%(t, t+2, t+3))
    a.e("v_cvt_pk_bf16_f32 v%d, v%d, v%d"%(t+1, t+4, t+5))
    a.e("v_lshlrev_b32 v%d, 16, v%d"%(t+2, t))
    a.e("v_and_b32 v%d, 0xffff0000, v%d"%(t+3, t))
    a.e("v_lshlrev_b32 v%d, 16, v%d"%(t+4, t+1))
    a.e("v_and_b32 v%d, 0xffff0000, v%d"%(t+5, t+1))
    for i in range(4):
        a.e("v_add_f32 v%d, 0x358637bd, v%d"%(t+2+i, t+2+i))
    a.e("v_cvt_pk_bf16_f32 v%d, v%d, v%d"%(dst2, t+2, t+3))
    a.e("v_cvt_pk_bf16_f32 v%d, v%d, v%d"%(dst2+1, t+4, t+5))

def store_tile_addr(a, rowstride, colbyte_sgpr, row0_sgpr, elt):
    a.e("v_lshrrev_b32 v18, 4, v%d"%V_LANE)
    a.e("v_and_b32 v19, 15, v%d"%V_LANE)
    a.e("s_lshl_b32 s9, s8, 5")
    a.e("s_add_u32 s9, s9, %s"%row0_sgpr)
    a.e("v_add_u32 v19, s9, v19")
    a.e("s_mov_b32 s14, %d"%rowstride)
    a.e("v_mul_lo_u32 v19, v19, s14")
    a.e("v_mul_u32_u24 v18, %d, v18"%(4*elt))
    a.e("v_add_u32 v19, v19, v18")
    a.e("v_add_u32 v16, %s, v19"%colbyte_sgpr)
    a.e("v_add_u32 v17, %d, v16"%(16*rowstride))

STAMP_OFF = 200*1024*1024
def stamp(a, idx):
    if 'stamp' not in EXP: return
    lab = a.newlab("ST")
    a.e("s_cmp_lg_u32 s8, 0")
    a.e("s_cbranch_scc1 %s"%lab)
    a.e("s_memtime s[40:41]")
    a.e("s_waitcnt lgkmcnt(0)")
    a.e("v_mov_b32 v200, s40")
    a.e("v_mov_b32 v201, s41")
    a.e("s_lshl_b32 s42, s2, 6")
    a.e("s_add_u32 s42, s42, %d"%(idx*8))
    a.e("v_mov_b32 v202, s42")
    a.e("s_add_u32 s44, s34, %d"%STAMP_OFF)
    a.e("s_addc_u32 s45, s35, 0")
    a.e("global_store_dwordx2 v202, v[200:201], s[44:45]")
    a.label(lab)

def gen_k1():
    a = Asm()
    a.label("k1_kernel")
    a.e("s_cmp_ge_u32 s2, 704")
    a.e("s_cbranch_scc1 K1_END")
    a.e("s_load_dwordx2 s[4:5], s[0:1], 0")
    a.e("s_load_dwordx2 s[20:21], s[0:1], 8")
    a.e("s_load_dwordx2 s[22:23], s[0:1], 32")
    a.e("s_load_dwordx2 s[24:25], s[0:1], 72")
    a.e("v_lshrrev_b32 v1, 6, v0")
    a.e("s_nop 0")
    a.e("v_readfirstlane_b32 s8, v1")
    a.e("s_nop 1")
    gemm_setup_common(a)
    zero_acc(a)
    a.e("s_waitcnt lgkmcnt(0)")
    a.e("s_mov_b32 s34, s24")
    a.e("s_mov_b32 s35, s25")
    stamp(a, 0)
    if 'early' in EXP: a.e("s_branch K1_END")
    if 'honly' in EXP:
        a.e("s_cmp_lt_u32 s2, 192")
        a.e("s_cbranch_scc1 K1_END")
    a.e("s_cmp_ge_u32 s2, 192")
    a.e("s_cbranch_scc1 K1_H")
    a.e("s_cmp_ge_u32 s2, 128")
    a.e("s_cbranch_scc1 K1_Q")
    a.c("kv tile: rt = id>>3, hg = id&7")
    a.e("s_lshr_b32 s15, s2, 3")
    a.e("s_lshl_b32 s15, s15, 7")
    a.e("s_and_b32 s16, s2, 7")
    a.e("s_mul_i32 s12, s16, 144")
    a.e("s_add_u32 s13, s12, %d"%(1152*2-144))
    a.e("s_add_u32 s12, s12, %d"%(576*2))
    a.e("s_mov_b32 s17, 3456")
    a.e("s_mov_b32 s18, %d"%(64*3456))
    a.e("s_mov_b32 s6, s20")
    a.e("s_mov_b32 s7, s21")
    a.e("s_mov_b32 s19, 1152")
    x_dma_offsets(a, "s19", "s15")
    w_dma_offsets(a, "s17", kv=True)
    main_loop(a, 9, 128, "s18")
    kv_epilogue(a)
    a.e("s_branch K1_END")
    a.label("K1_Q")
    a.e("s_sub_u32 s16, s2, 128")
    a.e("s_lshr_b32 s15, s16, 2")
    a.e("s_lshl_b32 s15, s15, 7")
    a.e("s_and_b32 s16, s16, 3")
    a.e("s_mul_i32 s12, s16, 288")
    a.e("s_mov_b32 s17, 3456")
    a.e("s_mov_b32 s18, %d"%(64*3456))
    a.e("s_mov_b32 s6, s20")
    a.e("s_mov_b32 s7, s21")
    a.e("s_mov_b32 s19, 1152")
    x_dma_offsets(a, "s19", "s15")
    w_dma_offsets(a, "s17")
    main_loop(a, 9, 128, "s18")
    a.nop(16)
    store_tile_addr(a, 1152, "s12", "s15", 2)
    a.e("s_add_u32 s24, s24, %d"%WS_PQ)
    a.e("s_addc_u32 s25, s25, 0")
    for f in range(2):
        for j in range(9):
            phi4(a, acc(f,j), V_E, V_E+2)
            a.e("global_store_dwordx2 v%d, %s, s[24:25] offset:%d"%(16+f, rng(V_E,2), 32*j))
            a.e("s_nop 1")
    a.e("s_branch K1_END")
    a.label("K1_H")
    a.e("s_sub_u32 s16, s2, 192")
    a.e("s_lshr_b32 s15, s16, 5")
    a.e("s_lshl_b32 s15, s15, 7")
    a.e("s_and_b32 s12, s16, 7")
    a.e("s_lshl_b32 s12, s12, 2")
    a.e("s_lshr_b32 s13, s16, 3")
    a.e("s_and_b32 s13, s13, 3")
    a.e("s_add_u32 s12, s12, s13")
    a.e("s_mul_i32 s12, s12, 288")
    a.e("s_mov_b32 s17, 9216")
    a.e("s_mov_b32 s18, %d"%(64*9216))
    a.e("s_mov_b32 s6, s22")
    a.e("s_mov_b32 s7, s23")
    a.e("s_mov_b32 s19, 1152")
    x_dma_offsets(a, "s19", "s15")
    w_dma_offsets(a, "s17")
    main_loop(a, 9, 128, "s18")
    a.nop(16)
    store_tile_addr(a, 9216, "s12", "s15", 2)
    for f in range(2):
        for j in range(9):
            s = acc(f,j)
            for r in range(4):
                a.e("v_max_f32 v%d, 0, v%d"%(s+r, s+r))
            a.e("v_cvt_pk_bf16_f32 v%d, v%d, v%d"%(V_E, s, s+1))
            a.e("v_cvt_pk_bf16_f32 v%d, v%d, v%d"%(V_E+1, s+2, s+3))
            if 'nostore' not in EXP: a.e("global_store_dwordx2 v%d, %s, s[24:25] offset:%d"%(16+f, rng(V_E,2), 32*j))
            a.e("s_nop 1")
    stamp(a, 5)
    a.label("K1_END")
    a.e("s_endpgm")
    return a.text()

def kv_pairs():
    pairs = []
    for td in range(5):
        for te in range(4, 9):
            ok = False
            for d in range(16*td, 16*td+16):
                if d >= 72: continue
                for e in range(16*te, 16*te+16):
                    if e < 72: continue
                    if d//18 == (e-72)//18: ok = True
            if ok: pairs.append((td, te))
    return pairs

def kv_epilogue(a):
    a.nop(16)
    a.e("s_barrier")
    a.e("v_lshrrev_b32 v18, 4, v%d"%V_LANE)
    a.e("v_and_b32 v19, 15, v%d"%V_LANE)
    a.e("s_lshl_b32 s9, s8, 5")
    a.e("v_add_u32 v19, s9, v19")
    a.e("v_mul_u32_u24 v19, 288, v19")
    a.e("v_lshlrev_b32 v16, 3, v18")
    a.e("v_add_u32 v16, v16, v19")
    for f in range(2):
        for j in range(9):
            s = acc(f,j)
            if j < 4:
                phi4(a, s, V_E, V_E+2)
            elif j > 4:
                a.e("v_cvt_pk_bf16_f32 v%d, v%d, v%d"%(V_E, s, s+1))
                a.e("v_cvt_pk_bf16_f32 v%d, v%d, v%d"%(V_E+1, s+2, s+3))
            else:
                phi4(a, s, V_E, V_E+2)
                a.e("v_cvt_pk_bf16_f32 v%d, v%d, v%d"%(V_E+2, s, s+1))
                a.e("v_cvt_pk_bf16_f32 v%d, v%d, v%d"%(V_E+3, s+2, s+3))
                a.e("v_cmp_gt_u32 vcc, 2, v18")
                a.e("s_nop 1")
                a.e("v_cndmask_b32 v%d, v%d, v%d, vcc"%(V_E, V_E+2, V_E))
                a.e("v_cndmask_b32 v%d, v%d, v%d, vcc"%(V_E+1, V_E+3, V_E+1))
            a.e("ds_write_b64 v16, %s offset:%d"%(rng(V_E,2), 16*288*f + 32*j))
    a.e("s_waitcnt lgkmcnt(0)")
    a.e("s_barrier")
    pairs = kv_pairs()
    jobs = [("p",)+p for p in pairs] + [("z", td) for td in range(5)]
    a.e("v_subrev_u32 v17, %d, v%d"%(WOFF, V_WA))
    ONE = V_E+8
    for r in range(4):
        a.e("v_mov_b32 v%d, 0x3f803f80"%(ONE+r))
    a.e("v_lshrrev_b32 v18, 4, v%d"%V_LANE)
    a.e("v_and_b32 v19, 15, v%d"%V_LANE)
    a.e("s_lshr_b32 s9, s15, 7")
    a.e("s_lshl_b32 s9, s9, 3")
    a.e("s_add_u32 s9, s9, s16")
    a.e("s_mul_i32 s9, s9, %d"%(4*342*4))
    a.e("s_add_u32 s26, s24, s9")
    a.e("s_addc_u32 s27, s25, 0")
    a.e("s_add_u32 s26, s26, %d"%WS_KVP)
    a.e("s_addc_u32 s27, s27, 0")
    FA = V_E+12; FB = V_E+16; DD = V_E+20; T = V_E+24
    for w in range(4):
        lab = a.newlab("KVJ")
        a.e("s_cmp_lg_u32 s8, %d"%w)
        a.e("s_cbranch_scc1 %s"%lab)
        for jb in jobs[w::4]:
            for r in range(4):
                a.e("v_mov_b32 v%d, 0"%(DD+r))
            td = jb[1]
            for ks in range(4):
                for u in range(2):
                    a.e("ds_read_b64_tr_b16 %s, v17 offset:%d"%(rng(FA+2*u,2), (32*ks+16*u)*288+32*td))
                if jb[0] == "p":
                    te = jb[2]
                    for u in range(2):
                        a.e("ds_read_b64_tr_b16 %s, v17 offset:%d"%(rng(FB+2*u,2), (32*ks+16*u)*288+32*te))
                a.e("s_waitcnt lgkmcnt(0)")
                a.e("v_mfma_f32_16x16x32_bf16 %s, %s, %s, %s"%(rng(DD,4), rng(FA,4), rng(FB if jb[0]=="p" else ONE,4), rng(DD,4)))
            a.nop(10)
            for r in range(4):
                a.e("v_lshlrev_b32 v%d, 2, v18"%T)
                a.e("v_add_u32 v%d, %d, v%d"%(T, 16*td+r, T))
                a.e("v_mul_u32_u24 v%d, 3641, v%d"%(T+1, T))
                a.e("v_lshrrev_b32 v%d, 16, v%d"%(T+1, T+1))
                a.e("v_mul_u32_u24 v%d, 18, v%d"%(T+2, T+1))
                a.e("v_sub_u32 v%d, v%d, v%d"%(T+2, T, T+2))
                a.e("v_cmp_gt_u32 vcc, 72, v%d"%T)
                a.e("s_mov_b64 s[28:29], vcc")
                if jb[0] == "p":
                    te = jb[2]
                    a.e("v_add_u32 v%d, %d, v19"%(T+3, 16*te))
                    a.e("v_subrev_u32 v%d, 72, v%d"%(T+3, T+3))
                    a.e("v_cmp_gt_u32 vcc, 72, v%d"%(T+3))
                    a.e("s_and_b64 s[28:29], s[28:29], vcc")
                    a.e("v_mul_u32_u24 v%d, 3641, v%d"%(T+4, T+3))
                    a.e("v_lshrrev_b32 v%d, 16, v%d"%(T+4, T+4))
                    a.e("v_cmp_eq_u32 vcc, v%d, v%d"%(T+4, T+1))
                    a.e("s_and_b64 s[28:29], s[28:29], vcc")
                    a.e("v_mul_u32_u24 v%d, 18, v%d"%(T+4, T+1))
                    a.e("v_sub_u32 v%d, v%d, v%d"%(T+3, T+3, T+4))
                    a.e("v_mul_u32_u24 v%d, 18, v%d"%(T+2, T+2))
                    a.e("v_add_u32 v%d, v%d, v%d"%(T+2, T+2, T+3))
                else:
                    a.e("v_cmp_eq_u32 vcc, 0, v19")
                    a.e("s_and_b64 s[28:29], s[28:29], vcc")
                    a.e("v_add_u32 v%d, 324, v%d"%(T+2, T+2))
                a.e("v_mul_u32_u24 v%d, 342, v%d"%(T+1, T+1))
                a.e("v_add_u32 v%d, v%d, v%d"%(T+2, T+2, T+1))
                a.e("v_lshlrev_b32 v%d, 2, v%d"%(T+2, T+2))
                a.e("s_and_saveexec_b64 s[30:31], s[28:29]")
                skip = a.newlab("KVS")
                a.e("s_cbranch_execz %s"%skip)
                a.e("global_store_dword v%d, v%d, s[26:27]"%(T+2, DD+r))
                a.label(skip)
                a.e("s_mov_b64 exec, s[30:31]")
        a.label(lab)

if __name__ == "__main__":
    print(gen_k1())
```

```python
from gen import *
from k1 import *

def bf16r(a, v, t):
    a.e("v_cvt_pk_bf16_f32 v%d, v%d, v%d"%(t, v, v))
    a.e("v_lshlrev_b32 v%d, 16, v%d"%(v, t))

def gen_k15():
    a = Asm()
    a.label("k15_kernel")
    a.e("s_cmp_ge_u32 s2, 96")
    a.e("s_cbranch_scc1 K15_END")
    a.e("s_load_dwordx2 s[4:5], s[0:1], 0")
    a.e("s_load_dwordx2 s[6:7], s[0:1], 16")
    a.e("s_load_dwordx2 s[10:11], s[0:1], 48")
    a.e("s_load_dwordx2 s[24:25], s[0:1], 72")
    a.e("v_lshrrev_b32 v1, 6, v0")
    a.e("s_nop 0")
    a.e("v_readfirstlane_b32 s8, v1")
    a.e("v_and_b32 v1, 63, v0")
    a.e("s_waitcnt lgkmcnt(0)")
    a.e("s_add_u32 s26, s24, %d"%WS_KVP)
    a.e("s_addc_u32 s27, s25, 0")
    a.e("s_cmp_ge_u32 s2, 32")
    a.e("s_cbranch_scc1 K15_J2")
    for it in range(2):
        a.e("v_add_u32 v9, %d, v0"%(256*it))
        a.e("v_cmp_gt_u32 vcc, 342, v9")
        a.e("s_and_saveexec_b64 s[30:31], vcc")
        a.e("s_mul_i32 s9, s2, %d"%(342*4))
        a.e("v_lshlrev_b32 v2, 2, v9")
        a.e("v_add_u32 v2, s9, v2")
        a.e("v_mov_b32 v3, 0")
        for rt in range(16):
            a.e("global_load_dword v%d, v2, s[26:27]"%(10+rt))
            a.e("v_add_u32 v2, %d, v2"%(32*342*4))
        a.e("s_waitcnt vmcnt(0)")
        for rt in range(16):
            a.e("v_add_f32 v3, v3, v%d"%(10+rt))
        bf16r(a, 3, 4)
        a.e("v_lshlrev_b32 v2, 2, v9")
        a.e("ds_write_b32 v2, v3")
        a.e("s_mov_b64 exec, s[30:31]")
    a.e("s_waitcnt lgkmcnt(0)")
    a.e("s_barrier")
    for i in range(3):
        a.e("v_add_u32 v2, %d, v0"%(256*i))
        a.e("v_cmp_gt_u32 vcc, 576, v2")
        a.e("s_and_saveexec_b64 s[30:31], vcc")
        skip = a.newlab("J1S")
        a.e("s_cbranch_execz %s"%skip)
        a.e("s_mul_i32 s9, s2, %d"%(18*1152))
        a.e("v_lshlrev_b32 v3, 1, v2")
        a.e("v_add_u32 v3, s9, v3")
        a.e("v_mov_b32 v7, v3")
        for e in range(18):
            a.e("global_load_ushort v%d, v7, s[6:7]"%(10+e))
            a.e("v_add_u32 v7, 1152, v7")
        a.e("s_waitcnt vmcnt(0)")
        for e in range(18):
            a.e("v_lshlrev_b32 v%d, 16, v%d"%(10+e, 10+e))
        a.e("v_mov_b32 v4, 0")
        for d in range(18):
            for q in range(9):
                a.e("ds_read_b64 v[%d:%d], v4 offset:%d"%(32+2*q, 33+2*q, (d*18+2*q)*4))
            a.e("s_waitcnt lgkmcnt(0)")
            a.e("v_mul_f32 v5, v32, v10")
            for e in range(1,18):
                a.e("v_fmac_f32 v5, v%d, v%d"%(32+e, 10+e))
            a.e("v_cvt_pk_bf16_f32 v5, v5, v5")
            a.e("v_add_u32 v6, %d, v3"%(WS_WP + d*1152))
            a.e("global_store_short v6, v5, s[24:25]")
        a.label(skip)
        a.e("s_mov_b64 exec, s[30:31]")
    a.e("s_branch K15_END")
    a.label("K15_J2")
    for i in range(3):
        a.e("v_add_u32 v2, %d, v0"%(256*i))
        a.e("v_cmp_gt_u32 vcc, 576, v2")
        a.e("s_and_saveexec_b64 s[30:31], vcc")
        skip = a.newlab("J2S")
        a.e("s_cbranch_execz %s"%skip)
        a.e("v_mul_u32_u24 v3, 3641, v2")
        a.e("v_lshrrev_b32 v3, 16, v3")
        a.e("v_mul_u32_u24 v4, 18, v3")
        a.e("v_sub_u32 v4, v2, v4")
        a.e("v_mul_u32_u24 v3, 342, v3")
        a.e("v_add_u32 v3, v3, v4")
        a.e("v_add_u32 v3, 324, v3")
        a.e("v_lshlrev_b32 v3, 2, v3")
        for rt in range(16):
            a.e("global_load_dword v%d, v3, s[26:27]"%(10+rt))
            a.e("v_add_u32 v3, %d, v3"%(32*342*4))
        a.e("s_waitcnt vmcnt(0)")
        a.e("v_mov_b32 v4, 0")
        for rt in range(16):
            a.e("v_add_f32 v4, v4, v%d"%(10+rt))
        bf16r(a, 4, 5)
        a.e("v_lshlrev_b32 v3, 2, v2")
        a.e("ds_write_b32 v3, v4")
        a.label(skip)
        a.e("s_mov_b64 exec, s[30:31]")
    a.e("s_waitcnt lgkmcnt(0)")
    a.e("s_barrier")
    a.e("v_mul_u32_u24 v2, 36, v1")
    for e in range(9):
        a.e("ds_read_b32 v%d, v2 offset:%d"%(40+e, 4*e))
    a.e("v_mul_u32_u24 v3, 18, v1")
    for e in range(9):
        a.e("global_load_ushort v%d, v3, s[10:11] offset:%d"%(50+e, 2*e))
    a.e("s_waitcnt vmcnt(0) lgkmcnt(0)")
    for e in range(9):
        a.e("v_lshlrev_b32 v%d, 16, v%d"%(50+e, 50+e))
    a.e("s_sub_u32 s9, s2, 32")
    a.e("s_lshl_b32 s9, s9, 5")
    a.e("s_lshl_b32 s12, s8, 3")
    a.e("s_add_u32 s9, s9, s12")
    a.e("s_mul_i32 s12, s9, 1152")
    a.e("v_add_u32 v3, s12, v3")
    a.e("s_add_u32 s14, s24, %d"%WS_PQ)
    a.e("s_addc_u32 s15, s25, 0")
    a.e("s_add_u32 s16, s24, %d"%WS_PQS)
    a.e("s_addc_u32 s17, s25, 0")
    for i in range(8):
        for e in range(9):
            a.e("global_load_ushort v%d, v3, s[4:5] offset:%d"%(60+e, 2*e))
            a.e("global_load_ushort v%d, v3, s[14:15] offset:%d"%(70+e, 2*e))
        a.e("s_waitcnt vmcnt(0)")
        a.e("v_mov_b32 v4, 0")
        a.e("v_mov_b32 v5, 0")
        for e in range(9):
            a.e("v_lshlrev_b32 v%d, 16, v%d"%(60+e, 60+e))
            a.e("v_lshlrev_b32 v%d, 16, v%d"%(70+e, 70+e))
            a.e("v_fmac_f32 v4, v%d, v%d"%(60+e, 50+e))
            a.e("v_fmac_f32 v5, v%d, v%d"%(70+e, 40+e))
        a.e("ds_swizzle_b32 v6, v5 offset:0x041F")
        a.e("s_waitcnt lgkmcnt(0)")
        a.e("v_add_f32 v5, v5, v6")
        bf16r(a, 5, 6)
        a.e("v_add_f32 v5, 0x358637bd, v5")
        bf16r(a, 5, 6)
        for off in (0x041F, 0x081F, 0x101F, 0x201F, 0x401F):
            a.e("ds_swizzle_b32 v6, v4 offset:0x%X"%off)
            a.e("s_waitcnt lgkmcnt(0)")
            a.e("v_add_f32 v4, v4, v6")
        a.e("s_nop 0")
        a.e("v_readlane_b32 s20, v4, 0")
        a.e("v_readlane_b32 s21, v4, 32")
        a.e("s_nop 1")
        a.e("v_mov_b32 v4, s20")
        a.e("v_add_f32 v4, s21, v4")
        bf16r(a, 4, 6)
        a.e("v_mul_f32 v6, 0xbfb8aa3b, v4")
        a.e("v_exp_f32 v6, v6")
        a.e("s_nop 0")
        a.e("v_add_f32 v6, 1.0, v6")
        a.e("v_rcp_f32 v6, v6")
        a.e("s_nop 0")
        bf16r(a, 6, 7)
        a.e("v_rcp_f32 v7, v5")
        a.e("s_nop 0")
        a.e("v_mul_f32 v7, v7, v6")
        for e in range(9):
            a.e("v_mul_f32 v8, v%d, v7"%(70+e))
            a.e("v_cvt_pk_bf16_f32 v8, v8, v8")
            a.e("global_store_short v3, v8, s[16:17] offset:%d"%(2*e))
        a.e("s_add_u32 s12, s9, %d"%i)
        a.e("s_lshl_b32 s12, s12, 2")
        a.e("s_add_u32 s12, s12, %d"%WS_G)
        a.e("v_mov_b32 v8, s12")
        a.e("s_mov_b64 s[30:31], exec")
        a.e("s_mov_b64 exec, 1")
        a.e("global_store_dword v8, v6, s[24:25]")
        a.e("s_mov_b64 exec, s[30:31]")
        a.e("v_add_u32 v3, 1152, v3")
    a.label("K15_END")
    a.e("s_endpgm")
    return a.text()

def gen_k2():
    a = Asm()
    a.label("k2_kernel")
    a.e("s_cmp_ge_u32 s2, 256")
    a.e("s_cbranch_scc1 K2_END")
    a.e("s_load_dwordx2 s[22:23], s[0:1], 40")
    a.e("s_load_dwordx2 s[24:25], s[0:1], 72")
    a.e("v_lshrrev_b32 v1, 6, v0")
    a.e("s_nop 0")
    a.e("v_readfirstlane_b32 s8, v1")
    a.e("s_nop 1")
    gemm_setup_common(a)
    zero_acc(a)
    a.e("s_waitcnt lgkmcnt(0)")
    a.e("s_and_b32 s20, s2, 3")
    a.e("s_lshr_b32 s12, s2, 2")
    a.e("s_and_b32 s12, s12, 3")
    a.e("s_mul_i32 s12, s12, 288")
    a.e("s_lshr_b32 s15, s2, 4")
    a.e("s_lshl_b32 s15, s15, 7")
    a.e("s_mul_i32 s21, s20, 20")
    a.e("s_cmp_gt_u32 s20, 0")
    a.e("s_cselect_b32 s9, 1, 0")
    a.e("s_add_u32 s21, s21, s9")
    a.e("s_lshl_b32 s9, s21, 7")
    a.e("s_add_u32 s4, s24, s9")
    a.e("s_addc_u32 s5, s25, 0")
    a.e("s_mul_i32 s9, s21, %d"%(64*1152))
    a.e("s_add_u32 s6, s22, s9")
    a.e("s_addc_u32 s7, s23, 0")
    a.e("s_mov_b32 s17, 1152")
    a.e("s_mov_b32 s18, %d"%(64*1152))
    a.e("s_mov_b32 s19, 9216")
    x_dma_offsets(a, "s19", "s15")
    w_dma_offsets(a, "s17")
    a.e("s_cmp_eq_u32 s20, 0")
    a.e("s_cbranch_scc1 K2_S0")
    a.e("s_cmp_eq_u32 s20, 3")
    a.e("s_cbranch_scc1 K2_S3")
    main_loop(a, 20, 128, "s18")
    a.e("s_branch K2_EPI")
    a.label("K2_S0")
    main_loop(a, 21, 128, "s18")
    a.e("s_branch K2_EPI")
    a.label("K2_S3")
    st = main_loop(a, 11, 128, "s18")
    scale_acc(a)
    a.e("s_add_u32 s4, s24, %d"%WS_PQS)
    a.e("s_addc_u32 s5, s25, 0")
    a.e("s_add_u32 s6, s24, %d"%WS_WP)
    a.e("s_addc_u32 s7, s25, 0")
    a.e("s_mov_b32 s19, 1152")
    x_dma_offsets(a, "s19", "s15")
    a.e("s_barrier")
    main_loop(a, 9, 128, "s18", stage0=st)
    a.nop(16)
    a.e("s_branch K2_ST")
    a.label("K2_EPI")
    scale_acc(a)
    a.label("K2_ST")
    store_tile_addr(a, 2304, "s13", "s15", 4) if False else None
    a.e("s_lshl_b32 s13, s12, 1")
    store_tile_addr(a, 2304, "s13", "s15", 4)
    a.e("s_mul_i32 s9, s20, %d"%(S*D*4))
    a.e("s_add_u32 s26, s24, s9")
    a.e("s_addc_u32 s27, s25, 0")
    a.e("s_add_u32 s26, s26, %d"%WS_P)
    a.e("s_addc_u32 s27, s27, 0")
    for f in range(2):
        for j in range(9):
            a.e("global_store_dwordx4 v%d, %s, s[26:27] offset:%d"%(16+f, rng(acc(f,j),4), 64*j))
    a.label("K2_END")
    a.e("s_endpgm")
    return a.text()

def scale_acc(a):
    a.nop(16)
    a.e("v_and_b32 v19, 15, v%d"%V_LANE)
    a.e("s_lshl_b32 s9, s8, 5")
    a.e("s_add_u32 s9, s9, s15")
    a.e("v_add_u32 v19, s9, v19")
    a.e("v_lshlrev_b32 v19, 2, v19")
    a.e("v_add_u32 v19, %d, v19"%WS_G)
    a.e("global_load_dword v%d, v19, s[24:25]"%(V_E))
    a.e("global_load_dword v%d, v19, s[24:25] offset:64"%(V_E+1))
    a.e("s_waitcnt vmcnt(0)")
    for f in range(2):
        a.e("v_sub_f32 v%d, 1.0, v%d"%(V_E+f, V_E+f))
        a.e("v_cvt_pk_bf16_f32 v%d, v%d, v%d"%(V_E+2, V_E+f, V_E+f))
        a.e("v_lshlrev_b32 v%d, 16, v%d"%(V_E+f, V_E+2))
    for f in range(2):
        for j in range(9):
            for r in range(4):
                a.e("v_mul_f32 v%d, v%d, v%d"%(acc(f,j)+r, acc(f,j)+r, V_E+f))
    a.e("s_nop 1")

def gen_k3():
    a = Asm()
    a.label("k3_kernel")
    a.e("s_cmp_ge_u32 s2, 576")
    a.e("s_cbranch_scc1 K3_END")
    a.e("s_load_dwordx2 s[4:5], s[0:1], 56")
    a.e("s_load_dwordx2 s[24:25], s[0:1], 72")
    a.e("s_lshl_b32 s9, s2, 8")
    a.e("v_add_u32 v1, s9, v0")
    a.e("v_lshlrev_b32 v2, 5, v1")
    a.e("v_lshlrev_b32 v3, 4, v1")
    a.e("s_waitcnt lgkmcnt(0)")
    a.e("s_add_u32 s24, s24, %d"%WS_P)
    a.e("s_addc_u32 s25, s25, 0")
    for p in range(4):
        a.e("global_load_dwordx4 v[%d:%d], v2, s[24:25]"%(8+8*p, 11+8*p))
        a.e("global_load_dwordx4 v[%d:%d], v2, s[24:25] offset:16"%(12+8*p, 15+8*p))
        a.e("s_add_u32 s24, s24, %d"%(S*D*4))
        a.e("s_addc_u32 s25, s25, 0")
    a.e("s_waitcnt vmcnt(0)")
    for p in range(1,4):
        for e in range(8):
            a.e("v_add_f32 v%d, v%d, v%d"%(8+e, 8+e, 8+8*p+e))
    for e in range(4):
        a.e("v_cvt_pk_bf16_f32 v%d, v%d, v%d"%(40+e, 8+2*e, 9+2*e))
    a.e("global_store_dwordx4 v3, v[40:43], s[4:5]")
    a.label("K3_END")
    a.e("s_endpgm")
    return a.text()
```

```python
import sys
from gen import kd
import k1, k15
def compose(kernels):
    out = ""
    for (name, grid, block, lds, text, vgpr) in kernels:
        out += "; @launch kernel=%s grid=(%d,1,1) block=(%d,1,1) lds=%d\n" % (name, grid, block, lds)
    out += '.amdgcn_target "amdgcn-amd-amdhsa--gfx950"\n.text\n'
    for (name, grid, block, lds, text, vgpr) in kernels:
        out += ".globl %s\n.p2align 8\n.type %s,@function\n" % (name, name)
        out += text
    out += '.section .rodata,"a"\n'
    for (name, grid, block, lds, text, vgpr) in kernels:
        out += ".p2align 6\n" + kd(name, vgpr)
    return out
if __name__ == "__main__":
    K1 = ("k1_kernel", 704, 256, 2*k1.STAGE, k1.gen_k1(), 216)
    open("k1only.s", "w").write(compose([K1]))
    ks = [K1, ("k15_kernel", 352, 256, 4096, k15.gen_k15(), 96),
          ("k2_kernel", 256, 256, 4*k1.STAGE, k15.gen_k2(), 216),
          ("k3_kernel", 576, 256, 0, k15.gen_k3(), 48)]
    open("full.s", "w").write(compose(ks))
```

```python
from gen import *
import os
EXP = os.environ.get('EXP','')

S=2048; D=576; DFF=4608
WS_H   = 0
WS_PQ  = WS_H + S*DFF*2
WS_PQS = WS_PQ + S*D*2
WS_KVP = WS_PQS + S*D*2
WS_WP  = WS_KVP + 16*32*342*4
WS_G   = WS_WP + D*D*2
WS_P   = WS_G + S*4
WS_END = WS_P + 4*S*D*4

STAGE = 16384 + 18432
XOFF = 0; WOFF = 16384

V_TID=0; V_LANE=1
V_XD=2
V_WD=6
V_XA=11
V_WA=15
V_T=16
V_XF=20
V_WF=36
V_ACC=108
V_E=180
def xf(s,f): return V_XF+8*s+4*f
def wf(s,j): return V_WF+36*s+4*j
def acc(f,j): return V_ACC+(f*9+j)*4

def rng(a,n): return "v[%d:%d]"%(a,a+n-1)

def gemm_setup_common(a):
    a.e("v_and_b32 v%d, 63, v0"%V_LANE)
    a.e("v_lshrrev_b32 v16, 4, v%d"%V_LANE)
    a.e("v_and_b32 v17, 15, v%d"%V_LANE)
    a.e("v_lshrrev_b32 v18, 1, v17")
    a.e("v_and_b32 v18, 7, v18")
    a.e("v_lshrrev_b32 v19, 1, v16")
    a.e("v_xor_b32 v18, v18, v19")
    a.e("v_lshlrev_b32 v18, 4, v18")
    a.e("v_and_b32 v19, 1, v16")
    a.e("v_lshlrev_b32 v19, 3, v19")
    a.e("v_add_u32 v18, v18, v19")
    a.e("s_lshl_b32 s9, s8, 5")
    a.e("v_add_u32 v19, s9, v17")
    a.e("v_lshlrev_b32 v19, 7, v19")
    a.e("v_add_u32 v18, v18, v19")
    for kh in range(2):
        for u in range(2):
            a.e("v_xor_b32 v%d, %d, v18"%(V_XA+2*kh+u, (4*kh+2*u)*16))
    a.e("v_lshlrev_b32 v18, 2, v16")
    a.e("v_lshrrev_b32 v19, 2, v17")
    a.e("v_add_u32 v18, v18, v19")
    a.e("v_mul_u32_u24 v18, 288, v18")
    a.e("v_and_b32 v19, 3, v17")
    a.e("v_lshlrev_b32 v19, 3, v19")
    a.e("v_add_u32 v18, v18, v19")
    a.e("v_add_u32 v%d, %d, v18"%(V_WA, WOFF))
    for q in range(5):
        a.e("v_add_u32 v%d, %d, v%d"%(200+q, 2*STAGE, V_XA+q))

def x_dma_offsets(a, rowstride_sgpr_or_imm, row0_sgpr):
    for t in range(4):
        a.e("s_lshl_b32 s9, s8, 8")
        a.e("s_add_u32 s9, s9, %d"%(64*t))
        a.e("v_add_u32 v16, s9, v%d"%V_LANE)
        a.e("v_lshrrev_b32 v17, 3, v16")
        a.e("v_and_b32 v18, 7, v16")
        a.e("v_lshrrev_b32 v19, 1, v17")
        a.e("v_and_b32 v19, 7, v19")
        a.e("v_xor_b32 v18, v18, v19")
        a.e("v_lshlrev_b32 v18, 4, v18")
        a.e("v_add_u32 v17, %s, v17"%row0_sgpr)
        a.e("v_mul_lo_u32 v17, v17, %s"%rowstride_sgpr_or_imm)
        a.e("v_add_u32 v%d, v17, v18"%(V_XD+t))

def w_dma_offsets(a, wstride_sgpr, kv=False, colbase_sgpr="s12", colbase2_sgpr="s13"):
    for t in range(5):
        a.e("s_mul_i32 s9, s8, 288")
        a.e("s_add_u32 s9, s9, %d"%(64*t))
        a.e("v_add_u32 v16, s9, v%d"%V_LANE)
        a.e("v_mul_u32_u24 v17, 3641, v16")
        a.e("v_lshrrev_b32 v17, 16, v17")
        a.e("v_mul_u32_u24 v18, 18, v17")
        a.e("v_sub_u32 v18, v16, v18")
        a.e("v_mul_lo_u32 v17, v17, %s"%wstride_sgpr)
        if not kv:
            a.e("v_lshlrev_b32 v18, 4, v18")
            a.e("v_add_u32 v17, v17, v18")
            a.e("v_add_u32 v%d, %s, v17"%(V_WD+t, colbase_sgpr))
        else:
            a.e("v_cmp_gt_u32 vcc, 9, v18")
            a.e("v_lshlrev_b32 v19, 4, v18")
            a.e("v_add_u32 v17, v17, v19")
            a.e("v_add_u32 v19, %s, v17"%colbase_sgpr)
            a.e("v_add_u32 v18, %s, v17"%colbase2_sgpr)
            a.e("v_cndmask_b32 v%d, v18, v19, vcc"%(V_WD+t))

def dma_issue(a, stage, xs="s[4:5]", ws_="s[6:7]"):
    base = stage*STAGE
    for t in range(4):
        a.e("s_lshl_b32 s9, s8, 12")
        a.e("s_add_u32 m0, s9, %d"%(base+XOFF+1024*t))
        a.e("s_nop 0")
        a.e("global_load_lds_dwordx4 v%d, %s"%(V_XD+t, xs))
    for t in range(5):
        a.e("s_mul_i32 s9, s8, 4608")
        a.e("s_add_u32 m0, s9, %d"%(base+WOFF+1024*t))
        if t == 4:
            a.e("s_mov_b32 exec_hi, 0")
        else:
            a.e("s_nop 0")
        a.e("global_load_lds_dwordx4 v%d, %s"%(V_WD+t, ws_))
        if t == 4:
            a.e("s_mov_b64 exec, -1")

def frag_reads(stage, s, kh):
    base = (stage&1)*STAGE
    hi = stage >> 1
    VXA = V_XA if not hi else 200
    VWA = V_WA if not hi else 204
    out = []
    if 'noread' in EXP: return out
    for f in range(2):
        if 'noxread' in EXP: break
        for u in range(2):
            out.append(("ds_read_b64 %s, v%d offset:%d"%(rng(xf(s,f)+2*u,2), VXA+2*kh+u, base+XOFF+2048*f), [xf(s,f)+2*u, xf(s,f)+2*u+1]))
    for j in range(9):
        for u in range(2):
            out.append(("ds_read_b64_tr_b16 %s, v%d offset:%d"%(rng(wf(s,j)+2*u,2), VWA, base+(32*kh+16*u)*288+32*j), [wf(s,j)+2*u, wf(s,j)+2*u+1]))
    return out

def mfma_half(a, s, side):
    k = 0
    per = (len(side) + 8) // 9
    for j in range(9):
        a.need(list(range(xf(s,0), xf(s,0)+8)) + list(range(wf(s,j), wf(s,j)+4)))
        for f in range(2):
            if 'nomfma' not in EXP: a.e("v_mfma_f32_16x16x32_bf16 %s, %s, %s, %s"%(rng(acc(f,j),4), rng(wf(s,j),4), rng(xf(s,f),4), rng(acc(f,j),4)))
        for q in range(per):
            if k < len(side):
                side[k](); k += 1
    while k < len(side):
        side[k](); k += 1

def zero_acc(a):
    for r in range(V_ACC, V_ACC+72):
        a.e("v_mov_b32 v%d, 0"%r)

NDMA = 9
def adv_ptrs(a, xadv, wadv_sgpr):
    a.e("s_add_u32 s4, s4, %d"%xadv)
    a.e("s_addc_u32 s5, s5, 0")
    a.e("s_add_u32 s6, s6, %s"%wadv_sgpr)
    a.e("s_addc_u32 s7, s7, 0")

def main_loop(a, nsteps, xadv, wadv_sgpr, nst=2, slot0=0):
    issued = 0
    for p in range(min(nst, nsteps)):
        if p > 0: adv_ptrs(a, xadv, wadv_sgpr)
        dma_issue(a, (slot0+p) % nst); issued += 1
    a.e("s_waitcnt vmcnt(%d)"%(NDMA*(issued-1)))
    a.e("s_barrier")
    for ins, regs in frag_reads((slot0) % nst, 0, 0): a.lds_read(ins, regs)
    for s in range(nsteps):
        sl = (slot0+s) % nst
        rB = [ (lambda ins=ins, regs=regs: a.lds_read(ins, regs)) for ins, regs in frag_reads(sl, 1, 1)]
        mfma_half(a, 0, rB)
        side = []
        if s+1 < nsteps:
            a.need(list(range(V_XF+8, V_XF+16)) + list(range(V_WF+36, V_WF+72)))
            a.e("s_waitcnt vmcnt(%d)"%(NDMA*max(issued-(s+2),0)))
            a.e("s_barrier")
            if s in (0, 1, 4, 8): stamp(a, {0:1,1:2,4:3,8:4}[s])
            if issued < nsteps:
                adv_ptrs(a, xadv, wadv_sgpr)
                dma_issue(a, (slot0+issued) % nst); issued += 1
            side = [ (lambda ins=ins, regs=regs: a.lds_read(ins, regs)) for ins, regs in frag_reads((slot0+s+1) % nst, 0, 0)]
        mfma_half(a, 1, side)
    return (slot0+nsteps) % nst

def phi4(a, src, dst2, tmp):
    t = tmp
    a.e("v_cvt_pk_bf16_f32 v%d, v%d, v%d"%(t, src, src+1))
    a.e("v_cvt_pk_bf16_f32 v%d, v%d, v%d"%(t+1, src+2, src+3))
    a.e("v_lshlrev_b32 v%d, 16, v%d"%(t+2, t))
    a.e("v_and_b32 v%d, 0xffff0000, v%d"%(t+3, t))
    a.e("v_lshlrev_b32 v%d, 16, v%d"%(t+4, t+1))
    a.e("v_and_b32 v%d, 0xffff0000, v%d"%(t+5, t+1))
    for i in range(4):
        x = t+2+i
        a.e("v_mul_f32 v%d, 0x3fb8aa3b, v%d"%(t+6, x))
        a.e("v_exp_f32 v%d, v%d"%(t+6, t+6))
        a.e("v_add_f32 v%d, 1.0, v%d"%(t+7, x))
        a.e("v_cmp_lt_f32 vcc, 0, v%d"%x)
        a.e("s_nop 1")
        a.e("v_cndmask_b32 v%d, v%d, v%d, vcc"%(x, t+6, t+7))
    a.e("v_cvt_pk_bf16_f32 v%d, v%d, v%d"%(t, t+2, t+3))
    a.e("v_cvt_pk_bf16_f32 v%d, v%d, v%d"%(t+1, t+4, t+5))
    a.e("v_lshlrev_b32 v%d, 16, v%d"%(t+2, t))
    a.e("v_and_b32 v%d, 0xffff0000, v%d"%(t+3, t))
    a.e("v_lshlrev_b32 v%d, 16, v%d"%(t+4, t+1))
    a.e("v_and_b32 v%d, 0xffff0000, v%d"%(t+5, t+1))
    for i in range(4):
        a.e("v_add_f32 v%d, 0x358637bd, v%d"%(t+2+i, t+2+i))
    a.e("v_cvt_pk_bf16_f32 v%d, v%d, v%d"%(dst2, t+2, t+3))
    a.e("v_cvt_pk_bf16_f32 v%d, v%d, v%d"%(dst2+1, t+4, t+5))

def store_tile_addr(a, rowstride, colbyte_sgpr, row0_sgpr, elt):
    a.e("v_lshrrev_b32 v18, 4, v%d"%V_LANE)
    a.e("v_and_b32 v19, 15, v%d"%V_LANE)
    a.e("s_lshl_b32 s9, s8, 5")
    a.e("s_add_u32 s9, s9, %s"%row0_sgpr)
    a.e("v_add_u32 v19, s9, v19")
    a.e("s_mov_b32 s14, %d"%rowstride)
    a.e("v_mul_lo_u32 v19, v19, s14")
    a.e("v_mul_u32_u24 v18, %d, v18"%(4*elt))
    a.e("v_add_u32 v19, v19, v18")
    a.e("v_add_u32 v16, %s, v19"%colbyte_sgpr)
    a.e("v_add_u32 v17, %d, v16"%(16*rowstride))

STAMP_OFF = 200*1024*1024
def stamp(a, idx):
    if 'stamp' not in EXP: return
    lab = a.newlab("ST")
    a.e("s_cmp_lg_u32 s8, 0")
    a.e("s_cbranch_scc1 %s"%lab)
    a.e("s_memtime s[40:41]")
    a.e("s_waitcnt lgkmcnt(0)")
    a.e("v_mov_b32 v200, s40")
    a.e("v_mov_b32 v201, s41")
    a.e("s_lshl_b32 s42, s2, 6")
    a.e("s_add_u32 s42, s42, %d"%(idx*8))
    a.e("v_mov_b32 v202, s42")
    a.e("s_add_u32 s44, s34, %d"%STAMP_OFF)
    a.e("s_addc_u32 s45, s35, 0")
    a.e("global_store_dwordx2 v202, v[200:201], s[44:45]")
    a.label(lab)

def gen_k1():
    a = Asm()
    a.label("k1_kernel")
    a.e("s_cmp_ge_u32 s2, 704")
    a.e("s_cbranch_scc1 K1_END")
    a.e("s_load_dwordx2 s[4:5], s[0:1], 0")
    a.e("s_load_dwordx2 s[20:21], s[0:1], 8")
    a.e("s_load_dwordx2 s[22:23], s[0:1], 32")
    a.e("s_load_dwordx2 s[24:25], s[0:1], 72")
    a.e("v_lshrrev_b32 v1, 6, v0")
    a.e("s_nop 0")
    a.e("v_readfirstlane_b32 s8, v1")
    a.e("s_nop 1")
    gemm_setup_common(a)
    zero_acc(a)
    a.e("s_waitcnt lgkmcnt(0)")
    a.e("s_mov_b32 s34, s24")
    a.e("s_mov_b32 s35, s25")
    stamp(a, 0)
    if 'early' in EXP: a.e("s_branch K1_END")
    if 'honly' in EXP:
        a.e("s_cmp_lt_u32 s2, 192")
        a.e("s_cbranch_scc1 K1_END")
    a.e("s_cmp_ge_u32 s2, 192")
    a.e("s_cbranch_scc1 K1_H")
    a.e("s_cmp_ge_u32 s2, 128")
    a.e("s_cbranch_scc1 K1_Q")
    a.c("kv tile: rt = id>>3, hg = id&7")
    a.e("s_lshr_b32 s15, s2, 3")
    a.e("s_lshl_b32 s15, s15, 7")
    a.e("s_and_b32 s16, s2, 7")
    a.e("s_mul_i32 s12, s16, 144")
    a.e("s_add_u32 s13, s12, %d"%(1152*2-144))
    a.e("s_add_u32 s12, s12, %d"%(576*2))
    a.e("s_mov_b32 s17, 3456")
    a.e("s_mov_b32 s18, %d"%(64*3456))
    a.e("s_mov_b32 s6, s20")
    a.e("s_mov_b32 s7, s21")
    a.e("s_mov_b32 s19, 1152")
    x_dma_offsets(a, "s19", "s15")
    w_dma_offsets(a, "s17", kv=True)
    main_loop(a, 9, 128, "s18")
    kv_epilogue(a)
    a.e("s_branch K1_END")
    a.label("K1_Q")
    a.e("s_sub_u32 s16, s2, 128")
    a.e("s_lshr_b32 s15, s16, 2")
    a.e("s_lshl_b32 s15, s15, 7")
    a.e("s_and_b32 s16, s16, 3")
    a.e("s_mul_i32 s12, s16, 288")
    a.e("s_mov_b32 s17, 3456")
    a.e("s_mov_b32 s18, %d"%(64*3456))
    a.e("s_mov_b32 s6, s20")
    a.e("s_mov_b32 s7, s21")
    a.e("s_mov_b32 s19, 1152")
    x_dma_offsets(a, "s19", "s15")
    w_dma_offsets(a, "s17")
    main_loop(a, 9, 128, "s18")
    a.nop(16)
    store_tile_addr(a, 1152, "s12", "s15", 2)
    a.e("s_add_u32 s24, s24, %d"%WS_PQ)
    a.e("s_addc_u32 s25, s25, 0")
    for f in range(2):
        for j in range(9):
            phi4(a, acc(f,j), V_E, V_E+2)
            a.e("global_store_dwordx2 v%d, %s, s[24:25] offset:%d"%(16+f, rng(V_E,2), 32*j))
            a.e("s_nop 1")
    a.e("s_branch K1_END")
    a.label("K1_H")
    a.e("s_sub_u32 s16, s2, 192")
    a.e("s_lshr_b32 s15, s16, 5")
    a.e("s_lshl_b32 s15, s15, 7")
    a.e("s_and_b32 s12, s16, 7")
    a.e("s_lshl_b32 s12, s12, 2")
    a.e("s_lshr_b32 s13, s16, 3")
    a.e("s_and_b32 s13, s13, 3")
    a.e("s_add_u32 s12, s12, s13")
    a.e("s_mul_i32 s12, s12, 288")
    a.e("s_mov_b32 s17, 9216")
    a.e("s_mov_b32 s18, %d"%(64*9216))
    a.e("s_mov_b32 s6, s22")
    a.e("s_mov_b32 s7, s23")
    a.e("s_mov_b32 s19, 1152")
    x_dma_offsets(a, "s19", "s15")
    w_dma_offsets(a, "s17")
    main_loop(a, 9, 128, "s18")
    a.nop(16)
    store_tile_addr(a, 9216, "s12", "s15", 2)
    for f in range(2):
        for j in range(9):
            s = acc(f,j)
            for r in range(4):
                a.e("v_max_f32 v%d, 0, v%d"%(s+r, s+r))
            a.e("v_cvt_pk_bf16_f32 v%d, v%d, v%d"%(V_E, s, s+1))
            a.e("v_cvt_pk_bf16_f32 v%d, v%d, v%d"%(V_E+1, s+2, s+3))
            if 'nostore' not in EXP: a.e("global_store_dwordx2 v%d, %s, s[24:25] offset:%d"%(16+f, rng(V_E,2), 32*j))
            a.e("s_nop 1")
    stamp(a, 5)
    a.label("K1_END")
    a.e("s_endpgm")
    return a.text()

def kv_pairs():
    pairs = []
    for td in range(5):
        for te in range(4, 9):
            ok = False
            for d in range(16*td, 16*td+16):
                if d >= 72: continue
                for e in range(16*te, 16*te+16):
                    if e < 72: continue
                    if d//18 == (e-72)//18: ok = True
            if ok: pairs.append((td, te))
    return pairs

def kv_epilogue(a):
    a.nop(16)
    a.e("s_barrier")
    a.e("v_lshrrev_b32 v18, 4, v%d"%V_LANE)
    a.e("v_and_b32 v19, 15, v%d"%V_LANE)
    a.e("s_lshl_b32 s9, s8, 5")
    a.e("v_add_u32 v19, s9, v19")
    a.e("v_mul_u32_u24 v19, 288, v19")
    a.e("v_lshlrev_b32 v16, 3, v18")
    a.e("v_add_u32 v16, v16, v19")
    for f in range(2):
        for j in range(9):
            s = acc(f,j)
            if j < 4:
                phi4(a, s, V_E, V_E+2)
            elif j > 4:
                a.e("v_cvt_pk_bf16_f32 v%d, v%d, v%d"%(V_E, s, s+1))
                a.e("v_cvt_pk_bf16_f32 v%d, v%d, v%d"%(V_E+1, s+2, s+3))
            else:
                phi4(a, s, V_E, V_E+2)
                a.e("v_cvt_pk_bf16_f32 v%d, v%d, v%d"%(V_E+2, s, s+1))
                a.e("v_cvt_pk_bf16_f32 v%d, v%d, v%d"%(V_E+3, s+2, s+3))
                a.e("v_cmp_gt_u32 vcc, 2, v18")
                a.e("s_nop 1")
                a.e("v_cndmask_b32 v%d, v%d, v%d, vcc"%(V_E, V_E+2, V_E))
                a.e("v_cndmask_b32 v%d, v%d, v%d, vcc"%(V_E+1, V_E+3, V_E+1))
            a.e("ds_write_b64 v16, %s offset:%d"%(rng(V_E,2), 16*288*f + 32*j))
    a.e("s_waitcnt lgkmcnt(0)")
    a.e("s_barrier")
    pairs = kv_pairs()
    jobs = [("p",)+p for p in pairs] + [("z", td) for td in range(5)]
    a.e("v_subrev_u32 v17, %d, v%d"%(WOFF, V_WA))
    ONE = V_E+8
    for r in range(4):
        a.e("v_mov_b32 v%d, 0x3f803f80"%(ONE+r))
    a.e("v_lshrrev_b32 v18, 4, v%d"%V_LANE)
    a.e("v_and_b32 v19, 15, v%d"%V_LANE)
    a.e("s_lshr_b32 s9, s15, 7")
    a.e("s_lshl_b32 s9, s9, 3")
    a.e("s_add_u32 s9, s9, s16")
    a.e("s_mul_i32 s9, s9, %d"%(4*342*4))
    a.e("s_add_u32 s26, s24, s9")
    a.e("s_addc_u32 s27, s25, 0")
    a.e("s_add_u32 s26, s26, %d"%WS_KVP)
    a.e("s_addc_u32 s27, s27, 0")
    FA = V_E+12; FB = V_E+16; DD = V_E+20; T = V_E+24
    for w in range(4):
        lab = a.newlab("KVJ")
        a.e("s_cmp_lg_u32 s8, %d"%w)
        a.e("s_cbranch_scc1 %s"%lab)
        for jb in jobs[w::4]:
            for r in range(4):
                a.e("v_mov_b32 v%d, 0"%(DD+r))
            td = jb[1]
            for ks in range(4):
                for u in range(2):
                    a.e("ds_read_b64_tr_b16 %s, v17 offset:%d"%(rng(FA+2*u,2), (32*ks+16*u)*288+32*td))
                if jb[0] == "p":
                    te = jb[2]
                    for u in range(2):
                        a.e("ds_read_b64_tr_b16 %s, v17 offset:%d"%(rng(FB+2*u,2), (32*ks+16*u)*288+32*te))
                a.e("s_waitcnt lgkmcnt(0)")
                a.e("v_mfma_f32_16x16x32_bf16 %s, %s, %s, %s"%(rng(DD,4), rng(FA,4), rng(FB if jb[0]=="p" else ONE,4), rng(DD,4)))
            a.nop(10)
            for r in range(4):
                a.e("v_lshlrev_b32 v%d, 2, v18"%T)
                a.e("v_add_u32 v%d, %d, v%d"%(T, 16*td+r, T))
                a.e("v_mul_u32_u24 v%d, 3641, v%d"%(T+1, T))
                a.e("v_lshrrev_b32 v%d, 16, v%d"%(T+1, T+1))
                a.e("v_mul_u32_u24 v%d, 18, v%d"%(T+2, T+1))
                a.e("v_sub_u32 v%d, v%d, v%d"%(T+2, T, T+2))
                a.e("v_cmp_gt_u32 vcc, 72, v%d"%T)
                a.e("s_mov_b64 s[28:29], vcc")
                if jb[0] == "p":
                    te = jb[2]
                    a.e("v_add_u32 v%d, %d, v19"%(T+3, 16*te))
                    a.e("v_subrev_u32 v%d, 72, v%d"%(T+3, T+3))
                    a.e("v_cmp_gt_u32 vcc, 72, v%d"%(T+3))
                    a.e("s_and_b64 s[28:29], s[28:29], vcc")
                    a.e("v_mul_u32_u24 v%d, 3641, v%d"%(T+4, T+3))
                    a.e("v_lshrrev_b32 v%d, 16, v%d"%(T+4, T+4))
                    a.e("v_cmp_eq_u32 vcc, v%d, v%d"%(T+4, T+1))
                    a.e("s_and_b64 s[28:29], s[28:29], vcc")
                    a.e("v_mul_u32_u24 v%d, 18, v%d"%(T+4, T+1))
                    a.e("v_sub_u32 v%d, v%d, v%d"%(T+3, T+3, T+4))
                    a.e("v_mul_u32_u24 v%d, 18, v%d"%(T+2, T+2))
                    a.e("v_add_u32 v%d, v%d, v%d"%(T+2, T+2, T+3))
                else:
                    a.e("v_cmp_eq_u32 vcc, 0, v19")
                    a.e("s_and_b64 s[28:29], s[28:29], vcc")
                    a.e("v_add_u32 v%d, 324, v%d"%(T+2, T+2))
                a.e("v_mul_u32_u24 v%d, 342, v%d"%(T+1, T+1))
                a.e("v_add_u32 v%d, v%d, v%d"%(T+2, T+2, T+1))
                a.e("v_lshlrev_b32 v%d, 2, v%d"%(T+2, T+2))
                a.e("s_and_saveexec_b64 s[30:31], s[28:29]")
                skip = a.newlab("KVS")
                a.e("s_cbranch_execz %s"%skip)
                a.e("global_store_dword v%d, v%d, s[26:27]"%(T+2, DD+r))
                a.label(skip)
                a.e("s_mov_b64 exec, s[30:31]")
        a.label(lab)

if __name__ == "__main__":
    print(gen_k1())
```

```python
from gen import *
from k1 import *

def bf16r(a, v, t):
    a.e("v_cvt_pk_bf16_f32 v%d, v%d, v%d"%(t, v, v))
    a.e("v_lshlrev_b32 v%d, 16, v%d"%(v, t))

def gen_k15():
    a = Asm()
    a.label("k15_kernel")
    a.e("s_cmp_ge_u32 s2, 352")
    a.e("s_cbranch_scc1 K15_END")
    a.e("s_load_dwordx2 s[4:5], s[0:1], 0")
    a.e("s_load_dwordx2 s[6:7], s[0:1], 16")
    a.e("s_load_dwordx2 s[10:11], s[0:1], 48")
    a.e("s_load_dwordx2 s[24:25], s[0:1], 72")
    a.e("v_lshrrev_b32 v1, 6, v0")
    a.e("s_nop 0")
    a.e("v_readfirstlane_b32 s8, v1")
    a.e("v_and_b32 v1, 63, v0")
    a.e("s_waitcnt lgkmcnt(0)")
    a.e("s_add_u32 s26, s24, %d"%WS_KVP)
    a.e("s_addc_u32 s27, s25, 0")
    a.e("s_cmp_ge_u32 s2, 96")
    a.e("s_cbranch_scc1 K15_J2")
    a.e("s_mul_i32 s36, s2, 43691")
    a.e("s_lshr_b32 s36, s36, 17")
    a.e("s_mul_i32 s37, s36, 3")
    a.e("s_sub_u32 s37, s2, s37")
    a.e("s_lshl_b32 s37, s37, 8")
    for it in range(2):
        a.e("v_add_u32 v9, %d, v0"%(256*it))
        a.e("v_cmp_gt_u32 vcc, 342, v9")
        a.e("s_and_saveexec_b64 s[30:31], vcc")
        a.e("s_mul_i32 s9, s36, %d"%(342*4))
        a.e("v_lshlrev_b32 v2, 2, v9")
        a.e("v_add_u32 v2, s9, v2")
        a.e("v_mov_b32 v3, 0")
        for rt in range(16):
            a.e("global_load_dword v%d, v2, s[26:27]"%(10+rt))
            a.e("v_add_u32 v2, %d, v2"%(32*342*4))
        a.e("s_waitcnt vmcnt(0)")
        for rt in range(16):
            a.e("v_add_f32 v3, v3, v%d"%(10+rt))
        bf16r(a, 3, 4)
        a.e("v_lshlrev_b32 v2, 2, v9")
        a.e("ds_write_b32 v2, v3")
        a.e("s_mov_b64 exec, s[30:31]")
    a.e("s_waitcnt lgkmcnt(0)")
    a.e("s_barrier")
    for i in range(1):
        a.e("v_add_u32 v2, s37, v0")
        a.e("v_cmp_gt_u32 vcc, 576, v2")
        a.e("s_and_saveexec_b64 s[30:31], vcc")
        skip = a.newlab("J1S")
        a.e("s_cbranch_execz %s"%skip)
        a.e("s_mul_i32 s9, s36, %d"%(18*1152))
        a.e("v_lshlrev_b32 v3, 1, v2")
        a.e("v_add_u32 v3, s9, v3")
        a.e("v_mov_b32 v7, v3")
        for e in range(18):
            a.e("global_load_ushort v%d, v7, s[6:7]"%(10+e))
            a.e("v_add_u32 v7, 1152, v7")
        a.e("s_waitcnt vmcnt(0)")
        for e in range(18):
            a.e("v_lshlrev_b32 v%d, 16, v%d"%(10+e, 10+e))
        a.e("v_mov_b32 v4, 0")
        for d in range(18):
            for q in range(9):
                a.e("ds_read_b64 v[%d:%d], v4 offset:%d"%(32+2*q, 33+2*q, (d*18+2*q)*4))
            a.e("s_waitcnt lgkmcnt(0)")
            a.e("v_mul_f32 v5, v32, v10")
            for e in range(1,18):
                a.e("v_fmac_f32 v5, v%d, v%d"%(32+e, 10+e))
            a.e("v_cvt_pk_bf16_f32 v5, v5, v5")
            a.e("v_add_u32 v6, %d, v3"%(WS_WP + d*1152))
            a.e("global_store_short v6, v5, s[24:25]")
        a.label(skip)
        a.e("s_mov_b64 exec, s[30:31]")
    a.e("s_branch K15_END")
    a.label("K15_J2")
    for i in range(3):
        a.e("v_add_u32 v2, %d, v0"%(256*i))
        a.e("v_cmp_gt_u32 vcc, 576, v2")
        a.e("s_and_saveexec_b64 s[30:31], vcc")
        skip = a.newlab("J2S")
        a.e("s_cbranch_execz %s"%skip)
        a.e("v_mul_u32_u24 v3, 3641, v2")
        a.e("v_lshrrev_b32 v3, 16, v3")
        a.e("v_mul_u32_u24 v4, 18, v3")
        a.e("v_sub_u32 v4, v2, v4")
        a.e("v_mul_u32_u24 v3, 342, v3")
        a.e("v_add_u32 v3, v3, v4")
        a.e("v_add_u32 v3, 324, v3")
        a.e("v_lshlrev_b32 v3, 2, v3")
        for rt in range(16):
            a.e("global_load_dword v%d, v3, s[26:27]"%(10+rt))
            a.e("v_add_u32 v3, %d, v3"%(32*342*4))
        a.e("s_waitcnt vmcnt(0)")
        a.e("v_mov_b32 v4, 0")
        for rt in range(16):
            a.e("v_add_f32 v4, v4, v%d"%(10+rt))
        bf16r(a, 4, 5)
        a.e("v_lshlrev_b32 v3, 2, v2")
        a.e("ds_write_b32 v3, v4")
        a.label(skip)
        a.e("s_mov_b64 exec, s[30:31]")
    a.e("s_waitcnt lgkmcnt(0)")
    a.e("s_barrier")
    a.e("v_mul_u32_u24 v2, 36, v1")
    for e in range(9):
        a.e("ds_read_b32 v%d, v2 offset:%d"%(40+e, 4*e))
    a.e("v_mul_u32_u24 v3, 18, v1")
    for e in range(9):
        a.e("global_load_ushort v%d, v3, s[10:11] offset:%d"%(50+e, 2*e))
    a.e("s_waitcnt vmcnt(0) lgkmcnt(0)")
    for e in range(9):
        a.e("v_lshlrev_b32 v%d, 16, v%d"%(50+e, 50+e))
    a.e("s_sub_u32 s9, s2, 96")
    a.e("s_lshl_b32 s9, s9, 3")
    a.e("s_lshl_b32 s12, s8, 1")
    a.e("s_add_u32 s9, s9, s12")
    a.e("s_mul_i32 s12, s9, 1152")
    a.e("v_add_u32 v3, s12, v3")
    a.e("s_add_u32 s14, s24, %d"%WS_PQ)
    a.e("s_addc_u32 s15, s25, 0")
    a.e("s_add_u32 s16, s24, %d"%WS_PQS)
    a.e("s_addc_u32 s17, s25, 0")
    for i in range(2):
        for e in range(9):
            a.e("global_load_ushort v%d, v3, s[4:5] offset:%d"%(60+e, 2*e))
            a.e("global_load_ushort v%d, v3, s[14:15] offset:%d"%(70+e, 2*e))
        a.e("s_waitcnt vmcnt(0)")
        a.e("v_mov_b32 v4, 0")
        a.e("v_mov_b32 v5, 0")
        for e in range(9):
            a.e("v_lshlrev_b32 v%d, 16, v%d"%(60+e, 60+e))
            a.e("v_lshlrev_b32 v%d, 16, v%d"%(70+e, 70+e))
            a.e("v_fmac_f32 v4, v%d, v%d"%(60+e, 50+e))
            a.e("v_fmac_f32 v5, v%d, v%d"%(70+e, 40+e))
        a.e("ds_swizzle_b32 v6, v5 offset:0x041F")
        a.e("s_waitcnt lgkmcnt(0)")
        a.e("v_add_f32 v5, v5, v6")
        bf16r(a, 5, 6)
        a.e("v_add_f32 v5, 0x358637bd, v5")
        bf16r(a, 5, 6)
        for off in (0x041F, 0x081F, 0x101F, 0x201F, 0x401F):
            a.e("ds_swizzle_b32 v6, v4 offset:0x%X"%off)
            a.e("s_waitcnt lgkmcnt(0)")
            a.e("v_add_f32 v4, v4, v6")
        a.e("s_nop 0")
        a.e("v_readlane_b32 s20, v4, 0")
        a.e("v_readlane_b32 s21, v4, 32")
        a.e("s_nop 1")
        a.e("v_mov_b32 v4, s20")
        a.e("v_add_f32 v4, s21, v4")
        bf16r(a, 4, 6)
        a.e("v_mul_f32 v6, 0xbfb8aa3b, v4")
        a.e("v_exp_f32 v6, v6")
        a.e("s_nop 0")
        a.e("v_add_f32 v6, 1.0, v6")
        a.e("v_rcp_f32 v6, v6")
        a.e("s_nop 0")
        bf16r(a, 6, 7)
        a.e("v_rcp_f32 v7, v5")
        a.e("s_nop 0")
        a.e("v_mul_f32 v7, v7, v6")
        for e in range(9):
            a.e("v_mul_f32 v8, v%d, v7"%(70+e))
            a.e("v_cvt_pk_bf16_f32 v8, v8, v8")
            a.e("global_store_short v3, v8, s[16:17] offset:%d"%(2*e))
        a.e("s_add_u32 s12, s9, %d"%i)
        a.e("s_lshl_b32 s12, s12, 2")
        a.e("s_add_u32 s12, s12, %d"%WS_G)
        a.e("v_mov_b32 v8, s12")
        a.e("s_mov_b64 s[30:31], exec")
        a.e("s_mov_b64 exec, 1")
        a.e("global_store_dword v8, v6, s[24:25]")
        a.e("s_mov_b64 exec, s[30:31]")
        a.e("v_add_u32 v3, 1152, v3")
    a.label("K15_END")
    a.e("s_endpgm")
    return a.text()

def gen_k2():
    a = Asm()
    a.label("k2_kernel")
    a.e("s_cmp_ge_u32 s2, 256")
    a.e("s_cbranch_scc1 K2_END")
    a.e("s_load_dwordx2 s[22:23], s[0:1], 40")
    a.e("s_load_dwordx2 s[24:25], s[0:1], 72")
    a.e("v_lshrrev_b32 v1, 6, v0")
    a.e("s_nop 0")
    a.e("v_readfirstlane_b32 s8, v1")
    a.e("s_nop 1")
    gemm_setup_common(a)
    zero_acc(a)
    a.e("s_waitcnt lgkmcnt(0)")
    a.e("s_mov_b32 s34, s24")
    a.e("s_mov_b32 s35, s25")
    stamp(a, 0)
    a.e("s_lshr_b32 s20, s2, 4")
    a.e("s_and_b32 s20, s20, 3")
    a.e("s_lshr_b32 s12, s2, 6")
    a.e("s_mul_i32 s12, s12, 288")
    a.e("s_and_b32 s15, s2, 7")
    a.e("s_lshl_b32 s15, s15, 1")
    a.e("s_lshr_b32 s9, s2, 3")
    a.e("s_and_b32 s9, s9, 1")
    a.e("s_add_u32 s15, s15, s9")
    a.e("s_lshl_b32 s15, s15, 7")
    a.e("s_mul_i32 s21, s20, 20")
    a.e("s_cmp_gt_u32 s20, 0")
    a.e("s_cselect_b32 s9, 1, 0")
    a.e("s_add_u32 s21, s21, s9")
    a.e("s_lshl_b32 s9, s21, 7")
    a.e("s_add_u32 s4, s24, s9")
    a.e("s_addc_u32 s5, s25, 0")
    a.e("s_mul_i32 s9, s21, %d"%(64*1152))
    a.e("s_add_u32 s6, s22, s9")
    a.e("s_addc_u32 s7, s23, 0")
    a.e("s_mov_b32 s17, 1152")
    a.e("s_mov_b32 s18, %d"%(64*1152))
    a.e("s_mov_b32 s19, 9216")
    x_dma_offsets(a, "s19", "s15")
    w_dma_offsets(a, "s17")
    a.e("s_cmp_eq_u32 s20, 0")
    a.e("s_cbranch_scc1 K2_S0")
    a.e("s_cmp_eq_u32 s20, 3")
    a.e("s_cbranch_scc1 K2_S3")
    main_loop(a, 20, 128, "s18", nst=4)
    a.e("s_branch K2_EPI")
    a.label("K2_S0")
    main_loop(a, 21, 128, "s18", nst=4)
    a.e("s_branch K2_EPI")
    a.label("K2_S3")
    st = main_loop(a, 11, 128, "s18", nst=4)
    scale_acc(a)
    a.e("s_add_u32 s4, s24, %d"%WS_PQS)
    a.e("s_addc_u32 s5, s25, 0")
    a.e("s_add_u32 s6, s24, %d"%WS_WP)
    a.e("s_addc_u32 s7, s25, 0")
    a.e("s_mov_b32 s19, 1152")
    x_dma_offsets(a, "s19", "s15")
    a.e("s_barrier")
    main_loop(a, 9, 128, "s18", nst=4, slot0=st)
    a.nop(16)
    a.e("s_branch K2_ST")
    a.label("K2_EPI")
    scale_acc(a)
    a.label("K2_ST")
    store_tile_addr(a, 2304, "s13", "s15", 4) if False else None
    a.e("s_lshl_b32 s13, s12, 1")
    store_tile_addr(a, 2304, "s13", "s15", 4)
    a.e("s_mul_i32 s9, s20, %d"%(S*D*4))
    a.e("s_add_u32 s26, s24, s9")
    a.e("s_addc_u32 s27, s25, 0")
    a.e("s_add_u32 s26, s26, %d"%WS_P)
    a.e("s_addc_u32 s27, s27, 0")
    for f in range(2):
        for j in range(9):
            a.e("global_store_dwordx4 v%d, %s, s[26:27] offset:%d"%(16+f, rng(acc(f,j),4), 64*j))
    stamp(a, 5)
    a.label("K2_END")
    a.e("s_endpgm")
    return a.text()

def scale_acc(a):
    a.nop(16)
    a.e("v_and_b32 v19, 15, v%d"%V_LANE)
    a.e("s_lshl_b32 s9, s8, 5")
    a.e("s_add_u32 s9, s9, s15")
    a.e("v_add_u32 v19, s9, v19")
    a.e("v_lshlrev_b32 v19, 2, v19")
    a.e("v_add_u32 v19, %d, v19"%WS_G)
    a.e("global_load_dword v%d, v19, s[24:25]"%(V_E))
    a.e("global_load_dword v%d, v19, s[24:25] offset:64"%(V_E+1))
    a.e("s_waitcnt vmcnt(0)")
    for f in range(2):
        a.e("v_sub_f32 v%d, 1.0, v%d"%(V_E+f, V_E+f))
        a.e("v_cvt_pk_bf16_f32 v%d, v%d, v%d"%(V_E+2, V_E+f, V_E+f))
        a.e("v_lshlrev_b32 v%d, 16, v%d"%(V_E+f, V_E+2))
    for f in range(2):
        for j in range(9):
            for r in range(4):
                a.e("v_mul_f32 v%d, v%d, v%d"%(acc(f,j)+r, acc(f,j)+r, V_E+f))
    a.e("s_nop 1")

def gen_k3():
    a = Asm()
    a.label("k3_kernel")
    a.e("s_cmp_ge_u32 s2, 576")
    a.e("s_cbranch_scc1 K3_END")
    a.e("s_load_dwordx2 s[4:5], s[0:1], 56")
    a.e("s_load_dwordx2 s[24:25], s[0:1], 72")
    a.e("s_lshl_b32 s9, s2, 8")
    a.e("v_add_u32 v1, s9, v0")
    a.e("v_lshlrev_b32 v2, 5, v1")
    a.e("v_lshlrev_b32 v3, 4, v1")
    a.e("s_waitcnt lgkmcnt(0)")
    a.e("s_add_u32 s24, s24, %d"%WS_P)
    a.e("s_addc_u32 s25, s25, 0")
    for p in range(4):
        a.e("global_load_dwordx4 v[%d:%d], v2, s[24:25]"%(8+8*p, 11+8*p))
        a.e("global_load_dwordx4 v[%d:%d], v2, s[24:25] offset:16"%(12+8*p, 15+8*p))
        a.e("s_add_u32 s24, s24, %d"%(S*D*4))
        a.e("s_addc_u32 s25, s25, 0")
    a.e("s_waitcnt vmcnt(0)")
    for p in range(1,4):
        for e in range(8):
            a.e("v_add_f32 v%d, v%d, v%d"%(8+e, 8+e, 8+8*p+e))
    for e in range(4):
        a.e("v_cvt_pk_bf16_f32 v%d, v%d, v%d"%(40+e, 8+2*e, 9+2*e))
    a.e("global_store_dwordx4 v3, v[40:43], s[4:5]")
    a.label("K3_END")
    a.e("s_endpgm")
    return a.text()
```
